```python
import torch

def _softmax(x, axis=-1):
    return torch.softmax(x, dim=axis)
def _gelu(x):
    return torch.nn.functional.gelu(x, approximate="tanh")
def _silu(x):
    return torch.nn.functional.silu(x)
def _sigmoid(x):
    return torch.sigmoid(x)
def _layernorm(x, axis=-1, eps=1e-5):
    m = x.mean(dim=axis, keepdim=True)
    v = x.var(dim=axis, keepdim=True, unbiased=False)
    return (x - m) / torch.sqrt(v + eps)
def _scatter_add(tgt, idx, src, axis=0):
    return tgt.clone().index_add_(axis, idx, src)
def _segment_sum(src, seg, n):
    out = torch.zeros((n,) + src.shape[1:], dtype=src.dtype)
    return out.index_add_(0, seg, src)
def _pad(x, pw):
    flat = tuple(v for pair in reversed(pw) for v in pair)
    return torch.nn.functional.pad(x, flat)

kernel_name = 'recurrent_scan__softmax_full_mha__glu_gated_glu__prompt'

def setup_inputs():

    _w = (lambda a: (lambda t: t.to(torch.bfloat16) if t.is_floating_point() else t)(torch.as_tensor(a)))
    def _A_setup():
        B, S, D = 1, 2048, 1024
        return {
            "x": _w((lambda *s: torch.randn(*s, dtype=torch.bfloat16) * 0.05)(B, S, D)),
            "wqkv": _w((lambda *s: torch.randn(*s, dtype=torch.bfloat16) * 0.05)(D, 3 * D)),
            "wo": _w((lambda *s: torch.randn(*s, dtype=torch.bfloat16) * 0.05)(D, D)),
        }
    _A_in = _A_setup()

    def _B_setup():
        B, S, D, F = 1, 2048, 1024, 3584
        return {
            "x": _w((lambda *s: torch.randn(*s, dtype=torch.bfloat16) * 0.05)(B, S, D)),
            "w_gate": _w((lambda *s: torch.randn(*s, dtype=torch.bfloat16) * 0.05)(D, F)),
            "w_up": _w((lambda *s: torch.randn(*s, dtype=torch.bfloat16) * 0.05)(D, F)),
            "w_down": _w((lambda *s: torch.randn(*s, dtype=torch.bfloat16) * 0.05)(F, D)),
        }
    _B_in = _B_setup()

    return {
        "A_x": _A_in["x"],
        "A_wqkv": _A_in["wqkv"],
        "A_wo": _A_in["wo"],
        "B_x": _B_in["x"],
        "B_w_gate": _B_in["w_gate"],
        "B_w_up": _B_in["w_up"],
        "B_w_down": _B_in["w_down"],
    }

def reference(A_x, A_wqkv, A_wo, B_x, B_w_gate, B_w_up, B_w_down):
    def _A_ref(x, wqkv, wo):
        B, S, D = x.shape
        H = 32; Dh = D // H
        qkv = (lambda x, *d: x.permute(*d))((x @ wqkv).reshape(B, S, 3, H, Dh), 2, 0, 3, 1, 4)
        q, k, v = qkv[0], qkv[1], qkv[2]
        scale = Dh ** -0.5
        scores = torch.einsum("bhqd,bhkd->bhqk", q, k) * scale
        p = _softmax(scores, axis=-1)
        o = torch.einsum("bhqk,bhkd->bhqd", p, v)
        return (lambda x, *d: x.permute(*d))(o, 0, 2, 1, 3).reshape(B, S, D) @ wo

    def _B_ref(x, w_gate, w_up, w_down):
        g = torch.einsum("bsd,df->bsf", x, w_gate)
        u = torch.einsum("bsd,df->bsf", x, w_up)
        h = _sigmoid(g) * u
        return torch.einsum("bsf,fd->bsd", h, w_down)

    x = A_x
    xn = _layernorm(x, axis=-1)
    s = _A_ref(xn, A_wqkv, A_wo)
    g = _silu(_B_ref(xn, B_w_gate, B_w_up, B_w_down))
    return x + s * g
```

```python
class Asm:
    def __init__(self):
        self.lines = []
    def __call__(self, s):
        for l in s.split("\n"):
            l = l.strip()
            if l: self.lines.append("    " + l)
    def label(self, l): self.lines.append(l + ":")
    def raw(self, s): self.lines.append(s)
    def ext(self, lst):
        for s in lst: self(s)
    def text(self): return "\n".join(self.lines) + "\n"

def vr(base, n=1, kind="v"):
    return f"{kind}{base}" if n == 1 else f"{kind}[{base}:{base+n-1}]"
class Reg:
    def __init__(self, kind, base, n=1): self.kind, self.base, self.n = kind, base, n
    def __str__(self): return vr(self.base, self.n, self.kind)
    def __getitem__(self, i):
        if isinstance(i, slice):
            a = i.start or 0; b = i.stop if i.stop is not None else self.n
            return Reg(self.kind, self.base + a, b - a)
        return Reg(self.kind, self.base + i, 1)
def V(b, n=1): return Reg("v", b, n)
def A(b, n=1): return Reg("a", b, n)
def S(b, n=1): return Reg("s", b, n)

def mfma32(d, a, b, c=None): return f"v_mfma_f32_32x32x16_bf16 {d}, {a}, {b}, {c if c is not None else d}"
def mfma16(d, a, b, c=None): return f"v_mfma_f32_16x16x32_bf16 {d}, {a}, {b}, {c if c is not None else d}"

def interleave(backbone, fillers, first=1, last=None, maxper=None):
    n = len(backbone)
    if last is None: last = n
    gaps = list(range(first, last + 1))
    out = []
    assign = {g: [] for g in range(0, n + 1)}
    nf = len(fillers)
    for k, f in enumerate(fillers):
        g = gaps[min(len(gaps) - 1, (k * len(gaps)) // max(nf, 1))]
        assign[g].append(f)
    def emit(f):
        if isinstance(f, (list, tuple)): out.extend(f)
        else: out.append(f)
    for f in assign[0]: emit(f)
    for i, b in enumerate(backbone):
        out.append(b)
        for f in assign[i + 1]: emit(f)
    return out

def srd(a, sb, lo, hi, size):
    a(f"s_mov_b32 s{sb}, {lo}")
    a(f"s_mov_b32 s{sb+1}, {hi}")
    a(f"s_mov_b32 s{sb+2}, {size}")
    a(f"s_mov_b32 s{sb+3}, 0x00020000")

def kernel_head(a, name):
    a.raw(f".globl {name}")
    a.raw(".p2align 8")
    a.raw(f".type {name},@function")
    a.label(name)

def kernel_desc(name, vgpr, acc, sgpr=102):
    return f""".p2align 6
.amdhsa_kernel {name}
  .amdhsa_next_free_vgpr {vgpr}
  .amdhsa_next_free_sgpr {sgpr}
  .amdhsa_accum_offset {acc}
  .amdhsa_group_segment_fixed_size 0
  .amdhsa_kernarg_size 80
  .amdhsa_user_sgpr_count 2
  .amdhsa_user_sgpr_kernarg_segment_ptr 1
  .amdhsa_system_sgpr_workgroup_id_x 1
  .amdhsa_float_denorm_mode_32 3
  .amdhsa_float_denorm_mode_16_64 3
.end_amdhsa_kernel
"""
```

```python
import sys, math, struct
sys.path.insert(0, "dev")
from asmlib import *

MB = 1 << 20
WS_XN, WS_Q, WS_KV, WS_H, WS_O, WS_G = 0, 4*MB, 8*MB, 16*MB, 32*MB, 36*MB
WS_SIZE = 256*MB
def f2u(x): return "0x%08x" % struct.unpack("<I", struct.pack("<f", x))[0]
LOG2E = 1.4426950408889634
import os
STAMP = int(os.environ.get("STAMP", "0"))
WS_STAMP = 200*MB
STAMPED = [(1, 0, 256, 4), (2, 0, 256, 4), (2, 256, 512, 4), (3, 0, 256, 4)]
def stamp(a, idx):
    if not STAMP: return
    a(f"s_memtime s[{80+4*idx}:{81+4*idx}]")
    a(f"s_memrealtime s[{82+4*idx}:{83+4*idx}]")
def stamp_store(a, kid, swave, srd_, vt):
    if not STAMP: return
    a("s_waitcnt lgkmcnt(0)")
    for i in range(4):
        a(f"v_mov_b32 v{vt+2*i}, s{80+4*i}")
        a(f"v_mov_b32 v{vt+2*i+1}, s{82+4*i}")
    a("s_lshl_b32 s3, s2, 4")
    a(f"s_add_u32 s3, s3, {swave}")
    a("s_lshl_b32 s3, s3, 5")
    a(f"s_add_u32 s3, s3, {WS_STAMP + kid*MB}")
    a(f"v_mov_b32 v{vt+8}, s3")
    a(f"buffer_store_dwordx4 v[{vt}:{vt+3}], v{vt+8}, {srd_}, 0 offen")
    a(f"buffer_store_dwordx4 v[{vt+4}:{vt+7}], v{vt+8}, {srd_}, 0 offen offset:16")

def gen_ln(a):
    name = "ln_kernel"
    kernel_head(a, name)
    a("s_cmp_ge_u32 s2, 256")
    a("s_cbranch_scc1 L_ln_end")
    a("s_load_dwordx2 s[4:5], s[0:1], 0")
    a("s_load_dwordx2 s[8:9], s[0:1], 72")
    a("v_and_b32 v1, 7, v0")
    a("v_lshrrev_b32 v2, 6, v0")
    a("v_bfe_u32 v3, v0, 3, 3")
    a("v_lshrrev_b32 v4, 1, v3")
    a("v_lshl_add_u32 v4, v2, 2, v4")
    a("v_and_b32 v7, 1, v3")
    a("s_lshl_b32 s3, s2, 14")
    a("v_lshlrev_b32 v5, 11, v1")
    a("v_lshl_add_u32 v5, v4, 6, v5")
    a("v_lshl_add_u32 v5, v7, 4, v5")
    a("v_lshlrev_b32 v6, 14, v4")
    a("v_lshl_add_u32 v6, v7, 9, v6")
    a("v_lshl_add_u32 v6, v1, 4, v6")
    a("s_lshr_b32 s12, s2, 5")
    a("s_lshl_b32 s12, s12, 19")
    a("s_bfe_u32 s13, s2, 0x40001")
    a("s_lshl_b32 s13, s13, 10")
    a("s_add_u32 s12, s12, s13")
    a("s_and_b32 s13, s2, 1")
    a("s_lshl_b32 s13, s13, 7")
    a("s_add_u32 s12, s12, s13")
    a("v_lshlrev_b32 v8, 5, v1")
    a("v_lshl_add_u32 v9, v2, 2, v8")
    a("s_waitcnt lgkmcnt(0)")
    a("s_mov_b32 s6, 0x400000")
    a("s_mov_b32 s7, 0x00020000")
    a(f"s_mov_b32 s10, {WS_SIZE}")
    a("s_mov_b32 s11, 0x00020000")
    a("buffer_load_dwordx4 v[12:15], v5, s[4:7], s3 offen")
    a("buffer_load_dwordx4 v[16:19], v5, s[4:7], s3 offen offset:32")
    X = 20
    a("s_waitcnt vmcnt(1)")
    for r in range(4):
        a(f"v_lshlrev_b32 v{X+2*r}, 16, v{12+r}")
        a(f"v_and_b32 v{X+2*r+1}, 0xffff0000, v{12+r}")
    a("s_waitcnt vmcnt(0)")
    for r in range(4, 8):
        a(f"v_lshlrev_b32 v{X+2*r}, 16, v{12+r}")
        a(f"v_and_b32 v{X+2*r+1}, 0xffff0000, v{12+r}")
    def reduce(src, ldsoff):
        a("s_nop 1")
        a(f"v_add_f32_dpp v40, v{src}, v{src} row_ror:8 row_mask:0xf bank_mask:0xf")
        a("v_mov_b32 v41, v40")
        a("s_nop 1")
        a("v_permlane16_swap_b32 v40, v41")
        a("v_add_f32 v40, v40, v41")
        a("v_mov_b32 v41, v40")
        a("s_nop 1")
        a("v_permlane32_swap_b32 v40, v41")
        a("v_add_f32 v40, v40, v41")
        a(f"ds_write_b32 v9, v40 offset:{ldsoff}")
        a("s_waitcnt lgkmcnt(0)")
        a("s_barrier")
        a(f"ds_read_b128 v[44:47], v8 offset:{ldsoff}")
        a(f"ds_read_b128 v[48:51], v8 offset:{ldsoff+16}")
        a("s_waitcnt lgkmcnt(0)")
        a("v_add_f32 v44, v44, v45")
        a("v_add_f32 v46, v46, v47")
        a("v_add_f32 v48, v48, v49")
        a("v_add_f32 v50, v50, v51")
        a("v_add_f32 v44, v44, v46")
        a("v_add_f32 v48, v48, v50")
        a("v_add_f32 v40, v44, v48")
    for r in range(4):
        a(f"v_add_f32 v{36+r}, v{X+r}, v{X+4+r}")
    for r in range(8):
        a(f"v_add_f32 v{36+r%4}, v{36+r%4}, v{X+8+r}")
    a("v_add_f32 v36, v36, v37")
    a("v_add_f32 v38, v38, v39")
    a("v_add_f32 v36, v36, v38")
    reduce(36, 0)
    a(f"v_mul_f32 v42, {f2u(1/1024)}, v40")
    for r in range(16):
        a(f"v_sub_f32 v{52+r}, v{X+r}, v42")
    for r in range(4):
        a(f"v_mul_f32 v{36+r}, v{52+r}, v{52+r}")
    for r in range(4, 16):
        a(f"v_fmac_f32 v{36+r%4}, v{52+r}, v{52+r}")
    a("v_add_f32 v36, v36, v37")
    a("v_add_f32 v38, v38, v39")
    a("v_add_f32 v36, v36, v38")
    reduce(36, 256)
    a(f"v_mul_f32 v43, {f2u(1/1024)}, v40")
    a("v_cvt_pk_bf16_f32 v41, v42, v43")
    a("v_lshlrev_b32 v42, 16, v41")
    a("v_and_b32 v43, 0xffff0000, v41")
    a(f"v_add_f32 v43, {f2u(1e-5)}, v43")
    a("v_cvt_pk_bf16_f32 v41, v43, v43")
    a("v_lshlrev_b32 v43, 16, v41")
    a("v_sqrt_f32 v43, v43")
    a("s_nop 0")
    a("v_cvt_pk_bf16_f32 v41, v43, v43")
    a("v_lshlrev_b32 v43, 16, v41")
    a("v_rcp_f32 v43, v43")
    for r in range(16):
        a(f"v_sub_f32 v{52+r}, v{X+r}, v42")
    for r in range(8):
        a(f"v_cvt_pk_bf16_f32 v{12+r}, v{52+2*r}, v{52+2*r+1}")
    for r in range(8):
        a(f"v_lshlrev_b32 v{X+2*r}, 16, v{12+r}")
        a(f"v_and_b32 v{X+2*r+1}, 0xffff0000, v{12+r}")
    for r in range(16):
        a(f"v_mul_f32 v{X+r}, v{X+r}, v43")
    dst = [12, 13, 16, 17, 14, 15, 18, 19]
    for r in range(8):
        a(f"v_cvt_pk_bf16_f32 v{dst[r]}, v{X+2*r}, v{X+2*r+1}")
    a("buffer_store_dwordx4 v[12:15], v6, s[8:11], s12 offen")
    a("buffer_store_dwordx4 v[16:19], v6, s[8:11], s12 offen offset:256")
    a.label("L_ln_end")
    a("s_endpgm")
    return (name, "grid=(256,1,1) block=(512,1,1) lds=512", kernel_desc(name, 72, 72, 32))

G1_SLOT = 36864
G1_QKV, G1_G, G1_U = 16384, 22528, 29696
STFLAG = os.environ.get("STFLAG", "")
def flat(l):
    o = []
    for f in l:
        if isinstance(f, (list, tuple)): o.extend(f)
        else: o.append(f)
    return o
def gen_gemm1(a):
    name = "gemm1_kernel"
    kernel_head(a, name)
    a("s_cmp_ge_u32 s2, 256")
    a("s_cbranch_scc1 L_g1_end")
    stamp(a, 0)
    a("s_load_dwordx2 s[4:5], s[0:1], 72")
    a("s_load_dwordx2 s[48:49], s[0:1], 8")
    a("s_load_dwordx4 s[52:55], s[0:1], 32")
    a("v_and_b32 v19, 63, v0")
    a("v_lshrrev_b32 v20, 6, v0")
    a("v_lshlrev_b32 v1, 4, v19")
    a("v_readfirstlane_b32 s46, v20")
    a("s_and_b32 s56, s2, 7")
    a("s_lshl_b32 s56, s56, 2")
    a("s_bfe_u32 s3, s2, 0x20003")
    a("s_add_u32 s56, s56, s3")
    a("s_lshr_b32 s57, s2, 5")
    a("s_lshl_b32 s45, s46, 12")
    a("s_lshl_b32 s43, s57, 19")
    a("s_add_u32 s43, s43, s45")
    if WS_XN: a(f"s_add_u32 s43, s43, {WS_XN}")
    a("s_lshl_b32 s58, s56, 6")
    a("s_mul_i32 s59, s56, 224")
    a("s_and_b32 s44, s56, 1")
    a("s_lshl_b32 s44, s44, 1")
    a("s_waitcnt lgkmcnt(0)")
    a(f"s_mov_b32 s6, {WS_SIZE}")
    a("s_mov_b32 s7, 0x00020000")
    def dma_x(slot):
        base = slot * G1_SLOT
        return [[f"s_add_u32 m0, s45, {base}", "s_nop 0", "buffer_load_dwordx4 v1, s[4:7], s43 offen lds"],
                "buffer_load_dwordx4 v1, s[4:7], s43 offen offset:1024 lds",
                "buffer_load_dwordx4 v1, s[4:7], s43 offen offset:2048 lds",
                "buffer_load_dwordx4 v1, s[4:7], s43 offen offset:3072 lds",
                "s_add_u32 s43, s43, 16384"]
    def dma_w(slot, split=False):
        base = slot * G1_SLOT
        out = []
        for i in range(5):
            l = [f"s_add_u32 m0, s{38+i}, {base}", "s_nop 0",
                 f"buffer_load_dwordx4 v{2+i}, s[{8+4*i}:{11+4*i}], s{28+i} offen lds",
                 f"s_add_u32 s{28+i}, s{28+i}, s{33+i}"]
            if split: out += [l[0], l[2], l[3]]
            else: out.append(l)
        return out
    a.ext(flat(dma_x(0)))
    for w in range(1, 4):
        a(f"s_cmp_eq_u32 s46, {w}")
        a(f"s_cbranch_scc1 L_g1_setup{w}")
    for w in range(4):
        a.label(f"L_g1_setup{w}")
        for i in range(5):
            n = 5*w + i
            sb = 8 + 4*i
            if n < 6:
                srd(a, sb, "s48", "s49", 1024*6144)
                a(f"v_add_u32 v20, {64*n}, v19")
                a("v_mul_u32_u24 v21, 5462, v20")
                a("v_lshrrev_b32 v21, 16, v21")
                a("v_mul_u32_u24 v22, 12, v21")
                a("v_sub_u32 v22, v20, v22")
                a("v_lshrrev_b32 v23, 1, v21")
                a("v_and_b32 v23, 2, v23")
                a("v_xor_b32 v22, v22, v23")
                a("v_mul_u32_u24 v21, 6144, v21")
                a("v_lshrrev_b32 v23, 2, v22")
                a("v_lshl_add_u32 v21, v23, 11, v21")
                a("v_and_b32 v22, 3, v22")
                a("v_lshl_add_u32 v21, v22, 4, v21")
                a(f"v_add_u32 v{2+i}, s58, v21")
                a(f"s_mov_b32 s{33+i}, {32*6144}")
                a(f"s_mov_b32 s{38+i}, {G1_QKV + 1024*n}")
            else:
                isg = n < 13
                nn = n - 6 if isg else n - 13
                srd(a, sb, "s52" if isg else "s54", "s53" if isg else "s55", 1024*7168)
                a(f"v_add_u32 v20, {64*nn}, v19")
                a("v_mul_u32_u24 v21, 4682, v20")
                a("v_lshrrev_b32 v21, 16, v21")
                a("v_mul_u32_u24 v22, 14, v21")
                a("v_sub_u32 v22, v20, v22")
                a("v_add_u32 v22, s44, v22")
                a("v_subrev_u32 v23, 14, v22")
                a("v_min_u32 v22, v22, v23")
                a("v_mul_u32_u24 v21, 7168, v21")
                a("v_lshl_add_u32 v21, v22, 4, v21")
                a(f"v_add_u32 v{2+i}, s59, v21")
                a(f"s_mov_b32 s{33+i}, {32*7168}")
                a(f"s_mov_b32 s{38+i}, {(G1_G if isg else G1_U) + 1024*nn}")
            a(f"s_mov_b32 s{28+i}, 0")
        if w < 3: a("s_branch L_g1_setup_done")
    a.label("L_g1_setup_done")
    a.ext(flat(dma_w(0)))
    for s in range(1, 4):
        a.ext(flat(dma_x(s))); a.ext(flat(dma_w(s)))
    a("s_lshr_b32 s47, s46, 1")
    a("s_lshl_b32 s3, s47, 13")
    a("v_add_u32 v7, s3, v1")
    a("v_lshrrev_b32 v20, 2, v19")
    a("v_and_b32 v21, 3, v19")
    a("v_lshlrev_b32 v21, 3, v21")
    a("v_bfe_u32 v22, v19, 4, 1")
    a("v_lshlrev_b32 v22, 5, v22")
    a("v_mul_u32_u24 v23, 192, v20")
    a("v_add_u32 v23, v23, v21")
    a(f"v_add_u32 v23, {G1_QKV}, v23")
    a("v_add_u32 v9, v23, v22")
    a("v_sub_u32 v11, v23, v22")
    a("v_mul_u32_u24 v23, 224, v20")
    a("v_add_u32 v23, v23, v21")
    a(f"v_add_u32 v13, {G1_G}, v23")
    for r in (7, 9, 11, 13):
        a(f"v_add_u32 v{r+1}, {2*G1_SLOT}, v{r}")
    for r in range(32, 256): a(f"v_mov_b32 v{r}, 0")
    for r in range(96): a(f"v_accvgpr_write_b32 a{r}, 0")
    a("s_and_b32 s3, s46, 1")
    a("s_cmp_eq_u32 s3, 1")
    a("s_cbranch_scc1 L_g1_wc1")

    def acc(f, i):
        idx = f*8 + i
        return A(4*idx, 4) if idx < 24 else V(32 + 4*(idx-24), 4)
    def xfrag(st, i): return A(96 + 72*st + 4*i, 4)
    def wfrag(st, f): return A(96 + 72*st + 32 + 4*f, 4)
    for wc in range(2):
        tiles = [("q", 0), ("q", 1), ("v", 4), ("v", 5), ("g", 4), ("u", 4), ("g", 5), ("u", 5), ("g", 6), ("u", 6)] if wc == 0 else \
                [("k", 2), ("k", 3), ("g", 0), ("u", 0), ("g", 1), ("u", 1), ("g", 2), ("u", 2), ("g", 3), ("u", 3)]
        def reads(slot, st):
            out = []
            sp, so = slot // 2, (slot % 2) * G1_SLOT
            def wr(f):
                kind, t = tiles[f]
                d = wfrag(st, f)
                for rd in range(2):
                    if kind in "gu":
                        out.append(f"ds_read_b64_tr_b16 {d[2*rd:2*rd+2]}, v{13+sp} offset:{so + (G1_U-G1_G if kind == 'u' else 0) + 32*t + 16*rd*224}")
                    else:
                        out.append(f"ds_read_b64_tr_b16 {d[2*rd:2*rd+2]}, v{(11 if t % 2 else 9)+sp} offset:{so + 32*t + 16*rd*192}")
            wr(0)
            for i in range(8):
                out.append(f"ds_read_b128 {xfrag(st, i)}, v{7+sp} offset:{so + i*1024}")
            for f in range(1, 10): wr(f)
            return out
        def mfmas(st):
            out = []
            for f in range(10):
                for ii in range(8):
                    i = ii if f % 2 == 0 else 7 - ii
                    if tiles[f][0] == "v": out.append(mfma16(acc(f, i), xfrag(st, i), wfrag(st, f)))
                    else: out.append(mfma16(acc(f, i), wfrag(st, f), xfrag(st, i)))
            return out
        def step(s, vm, dma, last=False):
            m = mfmas(s % 2)
            rd = [] if last else reads((s+1) % 4, (s+1) % 2)
            dm = []
            if dma:
                dx = dma_x(s % 4)
                dm = [dx[0][0], dx[0][2]] + dx[1:] + dma_w(s % 4, split=True)
            dpos = {1 + 2*((k*37)//20): d for k, d in enumerate(dm)}
            assert len(dpos) == len(dm)
            for g in range(80):
                a(m[g])
                if g % 2 == 0 and g // 2 < len(rd): a(rd[g // 2])
                if g in dpos: a(dpos[g])
            if not last:
                if vm is not None:
                    a(f"s_waitcnt vmcnt({vm}) lgkmcnt(0)")
                    a("s_barrier")
                else:
                    a("s_waitcnt lgkmcnt(0)")
        a.label(f"L_g1_wc{wc}")
        a("s_waitcnt vmcnt(27)")
        a("s_barrier")
        a.ext(reads(0, 0))
        a("s_mov_b32 s60, 7")
        stamp(a, 1)
        a("s_waitcnt vmcnt(18) lgkmcnt(0)")
        a("s_barrier")
        a.raw(".p2align 6")
        a.label(f"L_g1_loop{wc}")
        for s in range(4): step(s, 18, True)
        a("s_sub_u32 s60, s60, 1")
        a("s_cmp_lg_u32 s60, 0")
        a(f"s_cbranch_scc1 L_g1_loop{wc}")
        step(28, 9, False)
        step(29, 0, False)
        step(30, None, False)
        step(31, None, False, last=True)
        stamp(a, 2)
        a("s_lshl_b32 s61, s57, 4")
        a("s_lshl_b32 s3, s47, 3")
        a("s_add_u32 s61, s61, s3")
        a("s_lshl_b32 s62, s56, 7")
        a("s_add_u32 s62, s62, s61")
        a("s_lshl_b32 s63, s62, 10")
        a(f"s_add_u32 s63, s63, {WS_Q}")
        a("s_lshl_b32 s64, s62, 11")
        a(f"s_add_u32 s64, s64, {WS_KV}")
        a("s_lshr_b32 s65, s61, 3")
        a("s_mul_i32 s65, s65, 112")
        a("s_mul_i32 s3, s56, 7")
        a("s_add_u32 s3, s3, 1")
        a("s_lshr_b32 s3, s3, 1")
        a("s_add_u32 s65, s65, s3")
        a("s_lshl_b32 s65, s65, 13")
        a(f"s_add_u32 s65, s65, {WS_H}")
        a(f"s_add_u32 s70, s65, {3*8192}")
        a(f"s_sub_u32 s71, s65, {8192-8}")
        a("s_cmp_eq_u32 s44, 0")
        a("s_cselect_b32 s70, s70, s71")
        a(f"s_mov_b32 s66, {f2u(-LOG2E)}")
        a(f"s_mov_b32 s67, {f2u(-LOG2E)}")
        a(f"s_mov_b32 s68, {f2u(LOG2E/math.sqrt(32.0))}")
        a(f"s_mov_b32 s69, {f2u(LOG2E/math.sqrt(32.0))}")
        tmp = [0]
        def getv(r):
            if r.kind == "v": return r
            t_ = V(16 + 4*tmp[0], 4); tmp[0] = (tmp[0] + 1) % 4
            for k in range(4): a(f"v_accvgpr_read_b32 {t_[k]}, {r[k]}")
            return t_
        def sig(gs, us):
            for g_ in gs:
                for k in (0, 2): a(f"v_pk_mul_f32 {g_[k:k+2]}, {g_[k:k+2]}, s[66:67]")
            for g_ in gs:
                for k in range(4): a(f"v_exp_f32 {g_[k]}, {g_[k]}")
            for g_ in gs:
                for k in (0, 2): a(f"v_pk_add_f32 {g_[k:k+2]}, {g_[k:k+2]}, 1.0 op_sel_hi:[1,0]")
            for g_ in gs:
                for k in range(4): a(f"v_rcp_f32 {g_[k]}, {g_[k]}")
            for g_, u_ in zip(gs, us):
                for k in (0, 2): a(f"v_pk_mul_f32 {g_[k:k+2]}, {g_[k:k+2]}, {u_[k:k+2]}")
        def pack2(dst, r0, r1):
            a(f"v_cvt_pk_bf16_f32 {dst[0]}, {r0[0]}, {r0[1]}")
            a(f"v_cvt_pk_bf16_f32 {dst[1]}, {r0[2]}, {r0[3]}")
            a(f"v_cvt_pk_bf16_f32 {dst[2]}, {r1[0]}, {r1[1]}")
            a(f"v_cvt_pk_bf16_f32 {dst[3]}, {r1[2]}, {r1[3]}")
        fidx = {t: f for f, t in enumerate(tiles)}
        def ep_pair(p0, i):
            ga, ua, gb, ub = (getv(acc(fidx[k], i)) for k in (("g", p0), ("u", p0), ("g", p0+1), ("u", p0+1)))
            sig([ga, gb], [ua, ub])
            pack2(ub, ga, gb)
            a(f"s_add_u32 s3, s65, {(p0//2)*8192 + i*1024}")
            a(f"buffer_store_dwordx4 {ub}, v1, s[4:7], s3 offen {STFLAG}")
        def ep_single(i):
            g0, u0, g1_, u1 = acc(fidx[("g", 6)], i), acc(fidx[("u", 6)], i), acc(fidx[("g", 6)], i+1), acc(fidx[("u", 6)], i+1)
            sig([g0, g1_], [u0, u1])
            pack2(u1, g0, g1_)
            a(f"s_add_u32 s3, s70, {i*1024}")
            a(f"buffer_store_dwordx2 {u1[0:2]}, v1, s[4:7], s3 offen {STFLAG}")
            a(f"buffer_store_dwordx2 {u1[2:4]}, v1, s[4:7], s3 offen offset:1024 {STFLAG}")
        def ep_qk(kind, i):
            r0, r1 = getv(acc(0, i)), getv(acc(1, i))
            if kind == "q":
                for r in (r0, r1):
                    for k in (0, 2): a(f"v_pk_mul_f32 {r[k:k+2]}, {r[k:k+2]}, s[68:69]")
            pack2(r0, r0, r1)
            if kind == "q": a(f"s_add_u32 s3, s63, {i*1024}")
            else: a(f"s_add_u32 s3, s64, {(i//2)*4096 + (i%2)*1024}")
            a(f"buffer_store_dwordx4 {r0}, v1, s[4:7], s3 offen {STFLAG}")
        def ep_v(f, T):
            r0, r1 = getv(acc(2+f, 2*T)), getv(acc(2+f, 2*T+1))
            pack2(r0, r0, r1)
            a(f"s_add_u32 s3, s64, {T*4096 + 2048 + f*1024}")
            a(f"buffer_store_dwordx4 {r0}, v1, s[4:7], s3 offen {STFLAG}")
        if wc == 0:
            for i in range(8): ep_qk("q", i)
            for f in range(2):
                for T in range(4): ep_v(f, T)
            for i in range(8): ep_pair(4, i)
            for i in range(0, 8, 2): ep_single(i)
        else:
            for i in range(8): ep_qk("k", i)
            for i in range(8): ep_pair(0, i)
            for i in range(8): ep_pair(2, i)
        if STAMP:
            a("s_waitcnt vmcnt(0)")
            stamp(a, 3)
            stamp_store(a, 1, "s46", "s[4:7]", 20)
        if wc == 0: a("s_endpgm")
    a.label("L_g1_end")
    a("s_endpgm")
    return (name, f"grid=(256,1,1) block=(256,1,1) lds={4*G1_SLOT}", kernel_desc(name, 256+240, 256, 96))

K2_LDS = 65536 + 256
def gen_attn(a):
    QF = lambda X, m: V(16 + 8*X + 4*m, 4)
    S_ = lambda X: V(32 + 16*X, 16)
    NM = lambda X: V(64 + 16*X, 16)
    O_ = lambda X: V(96 + 16*X, 16)
    P_ = lambda X: V(128 + 8*X, 8)
    KF = lambda st, m: V(144 + 8*st + 4*m, 4)
    VF = lambda st, t: V(160 + 8*st + 4*t, 4)
    L_ = lambda X: V(176 + 4*X, 4)
    SEL = V(184, 4)
    a("s_and_b32 s56, s2, 7")
    a("s_lshl_b32 s56, s56, 2")
    a("s_bfe_u32 s3, s2, 0x20003")
    a("s_add_u32 s56, s56, s3")
    a("s_lshr_b32 s57, s2, 5")
    a("v_lshrrev_b32 v3, 5, v2")
    a("v_lshlrev_b32 v3, 8, v3")
    a("v_bfe_u32 v4, v2, 4, 1")
    a("v_and_b32 v5, 15, v2")
    a("v_lshl_add_u32 v6, v4, 10, v3")
    a("v_lshl_add_u32 v6, v5, 4, v6")
    a("v_bfe_u32 v7, v2, 3, 1")
    a("v_lshl_add_u32 v7, v7, 10, v3")
    a("v_lshl_add_u32 v7, v4, 7, v7")
    a("v_and_b32 v5, 7, v2")
    a("v_lshl_add_u32 v7, v5, 4, v7")
    a("v_bfe_u32 v5, v2, 2, 1")
    a("v_cmp_eq_u32 vcc, v4, v5")
    a("v_mov_b32 v8, 0x3f803f80")
    a("s_lshl_b32 s58, s56, 18")
    a(f"s_add_u32 s58, s58, {WS_KV}")
    a(f"v_cndmask_b32 {SEL[0]}, 0, v8, vcc")
    for k in range(1, 4): a(f"v_mov_b32 {SEL[k]}, {SEL[0]}")
    a("s_lshl_b32 s45, s46, 12")
    a("s_lshl_b32 s59, s56, 7")
    a("s_lshl_b32 s3, s57, 4")
    a("s_add_u32 s59, s59, s3")
    a("s_lshl_b32 s59, s59, 10")
    a("s_add_u32 s59, s59, s45")
    a(f"s_add_u32 s59, s59, {WS_Q}")
    a("s_mov_b32 s61, 1")
    a("s_waitcnt lgkmcnt(0)")
    a(f"s_mov_b32 s6, {WS_SIZE}")
    a("s_mov_b32 s7, 0x00020000")
    for X in range(2):
        for m in range(2):
            a(f"buffer_load_dwordx4 {QF(X, m)}, v6, s[4:7], s59 offen offset:{X*2048 + m*512}")
    a.label("L_at_restart")
    def dma(slot):
        return [[f"s_add_u32 m0, s45, {slot*16384}", "s_nop 0", "buffer_load_dwordx4 v1, s[4:7], s43 offen lds"],
                "buffer_load_dwordx4 v1, s[4:7], s43 offen offset:1024 lds",
                "buffer_load_dwordx4 v1, s[4:7], s43 offen offset:2048 lds",
                "buffer_load_dwordx4 v1, s[4:7], s43 offen offset:3072 lds",
                "s_add_u32 s43, s43, 16384"]
    a("s_mov_b32 s62, s58")
    a(f"buffer_load_dwordx4 {KF(0, 0)}, v7, s[4:7], s62 offen")
    a(f"buffer_load_dwordx4 {KF(0, 1)}, v7, s[4:7], s62 offen offset:512")
    a("s_add_u32 s43, s58, s45")
    a("s_add_u32 s44, s58, 0x40000")
    for st in range(3): a.ext(flat(dma(st)))
    a("v_mov_b32 v10, 0xff800000")
    a("v_mov_b32 v11, 0xff800000")
    for X in range(2):
        for k in range(16): a(f"v_mov_b32 {O_(X)[k]}, 0")
        for k in range(4): a(f"v_mov_b32 {L_(X)[k]}, 0")
    for k in range(8): a(f"v_mov_b32 {P_(1)[k]}, 0")
    for t in range(2):
        for k in range(4): a(f"v_mov_b32 {VF(1, t)[k]}, 0")
    a("s_waitcnt vmcnt(12)")
    a("s_mov_b32 s60, s61")
    a.label("L_at_maxloop")
    for X in range(2):
        a(mfma32(S_(X), KF(0, 0), QF(X, 0), "0"))
        a(mfma32(S_(X), KF(0, 1), QF(X, 1)))
    a("s_add_u32 s62, s62, 4096")
    a("s_sub_u32 s60, s60, 1")
    a("s_cmp_eq_u32 s60, 0")
    a("s_cbranch_scc1 L_at_maxnoload")
    a(f"buffer_load_dwordx4 {KF(0, 0)}, v7, s[4:7], s62 offen")
    a(f"buffer_load_dwordx4 {KF(0, 1)}, v7, s[4:7], s62 offen offset:512")
    a.label("L_at_maxnoload")
    a("s_nop 15")
    for X in range(2):
        for k in range(0, 16, 2): a(f"v_max3_f32 v{10+X}, {S_(X)[k]}, {S_(X)[k+1]}, v{10+X}")
    a("s_cmp_eq_u32 s60, 0")
    a("s_cbranch_scc1 L_at_maxdone")
    a("s_waitcnt vmcnt(0)")
    a("s_branch L_at_maxloop")
    a.label("L_at_maxdone")
    for X in range(2):
        a(f"v_mov_b32 v12, v{10+X}")
        a("s_nop 1")
        a(f"v_permlane32_swap_b32 v{10+X}, v12")
        a(f"v_max_f32 v12, v{10+X}, v12")
        for k in range(16): a(f"v_sub_f32 {NM(X)[k]}, 0, v12")
    a("s_waitcnt vmcnt(8)")
    a("s_barrier")
    def rdK(j):
        return [f"ds_read_b128 {KF(j % 2, m)}, v7 offset:{(j % 16)*4096 + m*512}" for m in range(2)]
    def rdV(j):
        return [f"ds_read_b128 {VF(j % 2, t)}, v6 offset:{(j % 16)*4096 + 2048 + t*512}" for t in range(2)]
    a.ext(rdK(0) + rdK(1) + rdV(0))
    a("s_mov_b32 s60, 4")
    stamp(a, 1)
    a("s_waitcnt lgkmcnt(0)")
    a(mfma32(S_(0), KF(0, 0), QF(0, 0), NM(0)))
    a(mfma32(S_(0), KF(0, 1), QF(0, 1)))
    a("s_nop 7")
    a("s_nop 7")
    def phase(j, X, extra):
        Y = 1 - X
        jq = j if X == 0 else j + 1
        jp = j - 1 if X == 0 else j
        mf = [mfma32(S_(Y), KF(jq % 2, 0), QF(Y, 0), NM(Y)), mfma32(S_(Y), KF(jq % 2, 1), QF(Y, 1)),
              mfma32(O_(Y), VF(jp % 2, 0), P_(Y)[0:4]), mfma32(O_(Y), VF(jp % 2, 1), P_(Y)[4:8]),
              mfma16(L_(Y), SEL, P_(Y)[0:4]), mfma16(L_(Y), SEL, P_(Y)[4:8])]
        s_, p_ = S_(X), P_(X)
        e = lambda k: f"v_exp_f32 {s_[k]}, {s_[k]}"
        c = lambda k: f"v_cvt_pk_bf16_f32 {p_[k]}, {s_[2*k]}, {s_[2*k+1]}"
        va = [[e(0), e(1), e(2), c(0)], [e(3), e(4), e(5), c(1)], [e(6), e(7), e(8), c(2)], [e(9), e(10), e(11), c(3)],
              [e(12), e(13), c(4), c(5)], [e(14), e(15), c(6), c(7)]]
        for g in range(6):
            a(mf[g])
            if g < len(extra): a.ext(flat([extra[g]]))
            a.ext(va[g])
    a.raw(".p2align 6")
    a.label("L_at_loop")
    for j in range(16):
        exA = []
        if j % 4 == 3:
            d = dma(((j // 4) + 3) % 4)
            exA = [["s_cmp_lt_u32 s43, s44", "s_cselect_b32 s43, s43, 0x20000000", d[0][0]], d[0][2], d[1], d[2], d[3], d[4]]
        phase(j, 0, exA)
        if j % 4 == 2:
            a("s_waitcnt vmcnt(4) lgkmcnt(0)")
            a("s_barrier")
        else:
            a("s_waitcnt lgkmcnt(0)")
        rk, rv = rdK(j + 2), rdV(j + 1)
        phase(j, 1, [[], [], rk[0], rk[1], rv[0], rv[1]])
    a("s_sub_u32 s60, s60, 1")
    a("s_cmp_lg_u32 s60, 0")
    a("s_cbranch_scc1 L_at_loop")
    stamp(a, 2)
    a("s_nop 1")
    a(mfma32(O_(1), VF(1, 0), P_(1)[0:4]))
    a(mfma32(O_(1), VF(1, 1), P_(1)[4:8]))
    a(mfma16(L_(1), SEL, P_(1)[0:4]))
    a(mfma16(L_(1), SEL, P_(1)[4:8]))
    a("s_waitcnt vmcnt(0) lgkmcnt(0)")
    a("s_nop 15")
    a("s_cmp_lg_u32 s61, 1")
    a("s_cbranch_scc1 L_at_fin")
    a(f"v_max_f32 v10, {L_(0)[0]}, {L_(1)[0]}")
    a(f"v_add_f32 v11, {L_(0)[0]}, {L_(1)[0]}")
    a("v_mov_b32 v12, 0")
    for X in range(2):
        for k in range(0, 16, 2): a(f"v_max3_f32 v12, abs({O_(X)[k]}), abs({O_(X)[k+1]}), v12")
    a("v_mov_b32 v13, 0x5f800000")
    a("v_cmp_nle_f32 vcc, v11, v13")
    a("v_mov_b32 v13, 0x7f000000")
    a("v_cmp_nle_f32 s[64:65], v12, v13")
    a("s_or_b64 vcc, vcc, s[64:65]")
    a("s_cmp_lg_u64 vcc, 0")
    a("s_cselect_b32 s3, 1, 0")
    a("v_mov_b32 v10, s3")
    a("s_lshl_b32 s3, s46, 2")
    a("s_add_u32 s3, s3, 65536")
    a("v_mov_b32 v11, s3")
    a("ds_write_b32 v11, v10")
    a("v_mov_b32 v11, 65536")
    a("s_waitcnt lgkmcnt(0)")
    a("s_barrier")
    a("ds_read_b128 v[12:15], v11")
    a("s_waitcnt lgkmcnt(0)")
    a("v_or3_b32 v12, v12, v13, v14")
    a("v_or_b32 v12, v12, v15")
    a("s_nop 1")
    a("v_readfirstlane_b32 s3, v12")
    a("s_mov_b32 s61, 64")
    a("s_cmp_lg_u32 s3, 0")
    a("s_cbranch_scc1 L_at_restart")
    a.label("L_at_fin")
    a("s_lshl_b32 s62, s57, 1")
    a("s_lshr_b32 s3, s46, 1")
    a("s_add_u32 s62, s62, s3")
    a("s_lshl_b32 s62, s62, 5")
    a("s_add_u32 s62, s62, s56")
    a("s_lshl_b32 s62, s62, 13")
    a("s_and_b32 s3, s46, 1")
    a("s_lshl_b32 s3, s3, 12")
    a("s_add_u32 s62, s62, s3")
    a(f"s_add_u32 s62, s62, {WS_O}")
    for X in range(2):
        a(f"v_rcp_f32 v{10+X}, {L_(X)[0]}")
    for X in range(2):
        o = O_(X)
        for k in range(16): a(f"v_mul_f32 {o[k]}, {o[k]}, v{10+X}")
        d = S_(X)
        for idx, r in enumerate((0, 2, 8, 10, 4, 6, 12, 14)):
            a(f"v_cvt_pk_bf16_f32 {d[idx]}, {o[r]}, {o[r+1]}")
        a(f"buffer_store_dwordx4 {d[0:4]}, v6, s[4:7], s62 offen offset:{X*2048} {STFLAG}")
        a(f"buffer_store_dwordx4 {d[4:8]}, v6, s[4:7], s62 offen offset:{X*2048+512} {STFLAG}")
    if STAMP:
        a("s_waitcnt vmcnt(0)")
        stamp(a, 3)
        stamp_store(a, 2, "s46", "s[4:7]", 20)
    a("s_endpgm")

def gen_down(a):
    ACC = lambda c, i: V(64 + 16*(2*c + i), 16)
    HF = lambda st, m, i: V(128 + 32*st + 8*m + 4*i, 4)
    WF = lambda st, m, c: V(128 + 32*st + 16 + 8*m + 4*c, 4)
    a("s_load_dwordx2 s[8:9], s[0:1], 48")
    a("s_and_b32 s56, s2, 1")
    a("s_bfe_u32 s57, s2, 0x20001")
    a("s_lshl_b32 s57, s57, 2")
    a("s_bfe_u32 s3, s2, 0x20003")
    a("s_add_u32 s57, s57, s3")
    a("s_bfe_u32 s58, s2, 0x30005")
    a("s_lshl_b32 s45, s46, 11")
    a("s_mul_i32 s43, s57, 112")
    a("s_mul_i32 s3, s56, 56")
    a("s_add_u32 s43, s43, s3")
    a("s_lshl_b32 s43, s43, 13")
    a("s_add_u32 s43, s43, s45")
    a(f"s_add_u32 s43, s43, {WS_H}")
    a("s_mul_i32 s47, s56, 1792")
    a("s_lshl_b32 s3, s46, 3")
    a("s_add_u32 s47, s47, s3")
    a("s_lshl_b32 s47, s47, 11")
    a("s_lshl_b32 s3, s58, 8")
    a("s_add_u32 s47, s47, s3")
    a("s_add_u32 s48, s47, 7168")
    a("v_lshrrev_b32 v3, 4, v2")
    a("v_bfe_u32 v4, v2, 2, 2")
    a("v_xor_b32 v4, v4, v3")
    a("v_and_b32 v5, 3, v2")
    a("v_lshlrev_b32 v8, 11, v3")
    a("v_lshl_add_u32 v8, v4, 6, v8")
    a("v_lshl_add_u32 v8, v5, 4, v8")
    a("s_waitcnt lgkmcnt(0)")
    a(f"s_mov_b32 s6, {WS_SIZE}")
    a("s_mov_b32 s7, 0x00020000")
    a(f"s_mov_b32 s10, {3584*2048}")
    a("s_mov_b32 s11, 0x00020000")
    def dma(slot):
        return [f"s_add_u32 m0, s45, {slot*16384}",
                "buffer_load_dwordx4 v1, s[4:7], s43 offen lds",
                ["buffer_load_dwordx4 v1, s[4:7], s43 offen offset:1024 lds", f"s_add_u32 m0, s45, {slot*16384 + 8192}", "s_add_u32 s43, s43, 8192"],
                "buffer_load_dwordx4 v8, s[8:11], s47 offen lds",
                ["buffer_load_dwordx4 v8, s[8:11], s48 offen offset:1024 lds", "s_add_u32 s47, s47, 65536", "s_add_u32 s48, s48, 65536"]]
    for st in range(4):
        d = dma(st); a.ext(flat([d[0], "s_nop 0"] + d[1:]))
    a("s_lshr_b32 s59, s46, 1")
    a("s_and_b32 s60, s46, 1")
    a("v_lshrrev_b32 v3, 5, v2")
    a("v_bfe_u32 v4, v2, 4, 1")
    a("v_and_b32 v5, 15, v2")
    a("v_lshlrev_b32 v9, 8, v3")
    a("v_lshl_add_u32 v9, v4, 10, v9")
    a("v_lshl_add_u32 v9, v5, 4, v9")
    a("s_lshl_b32 s3, s59, 12")
    a("v_add_u32 v9, s3, v9")
    a("v_bfe_u32 v5, v2, 2, 2")
    a("v_lshl_add_u32 v6, v3, 2, v5")
    a("v_lshlrev_b32 v6, 8, v6")
    a("v_lshl_add_u32 v6, v4, 5, v6")
    a("v_and_b32 v7, 3, v2")
    a("v_lshl_add_u32 v6, v7, 3, v6")
    a("v_add_u32 v6, 8192, v6")
    a("s_lshl_b32 s3, s60, 1")
    a("v_xor_b32 v7, s3, v5")
    a("v_lshl_add_u32 v10, v7, 6, v6")
    a("v_xor_b32 v7, 1, v7")
    a("v_lshl_add_u32 v11, v7, 6, v6")
    for r in range(64, 128): a(f"v_mov_b32 v{r}, 0")
    def reads(slot, st):
        out = []
        for m in range(2):
            for c in range(2):
                for rd in range(2):
                    out.append(f"ds_read_b64_tr_b16 {WF(st, m, c)[2*rd:2*rd+2]}, v{10+c} offset:{slot*16384 + (8*m + 16*rd)*256}")
            for i in range(2):
                out.append(f"ds_read_b128 {HF(st, m, i)}, v9 offset:{slot*16384 + i*2048 + m*512}")
        return out
    def step(s, vm, dodma, last=False):
        st = s % 2
        m_ = [mfma32(ACC(c, i), WF(st, m, c), HF(st, m, i)) for m in range(2) for c in range(2) for i in range(2)]
        rd = [] if last else reads((s+1) % 4, (s+1) % 2)
        dm = dma(s % 4) if dodma else []
        for g in range(8):
            a(m_[g])
            a.ext(rd[2*g:2*g+2])
            if g >= 2 and g - 2 < len(dm): a.ext(flat([dm[g-2]]))
        if not last:
            if vm is not None:
                a(f"s_waitcnt vmcnt({vm}) lgkmcnt(0)")
                a("s_barrier")
            else: a("s_waitcnt lgkmcnt(0)")
    a("s_waitcnt vmcnt(12)")
    a("s_barrier")
    a.ext(reads(0, 0))
    a("s_mov_b32 s61, 13")
    stamp(a, 1)
    a("s_waitcnt vmcnt(8) lgkmcnt(0)")
    a("s_barrier")
    a.raw(".p2align 6")
    a.label("L_dn_loop")
    for s in range(4): step(s, 8, True)
    a("s_sub_u32 s61, s61, 1")
    a("s_cmp_lg_u32 s61, 0")
    a("s_cbranch_scc1 L_dn_loop")
    step(52, 4, False)
    step(53, 0, False)
    step(54, None, False)
    step(55, None, False, last=True)
    stamp(a, 2)
    a("s_lshl_b32 s62, s56, 6")
    a("s_lshl_b32 s3, s57, 2")
    a("s_add_u32 s62, s62, s3")
    a("s_lshl_b32 s3, s59, 1")
    a("s_add_u32 s62, s62, s3")
    a("s_lshl_b32 s62, s62, 5")
    a("s_lshl_b32 s3, s58, 2")
    a("s_add_u32 s62, s62, s3")
    a("s_lshl_b32 s3, s60, 1")
    a("s_add_u32 s62, s62, s3")
    a("s_lshl_b32 s62, s62, 12")
    a(f"s_add_u32 s62, s62, {WS_G}")
    a("s_nop 7")
    for c in range(2):
        for i in range(2):
            a(f"s_add_u32 s3, s62, {(i*32 + c)*4096}")
            for q in range(4):
                a(f"buffer_store_dwordx4 {ACC(c, i)[4*q:4*q+4]}, v1, s[4:7], s3 offen offset:{q*1024} {STFLAG}")
    if STAMP:
        a("s_waitcnt vmcnt(0)")
        stamp(a, 3)
        stamp_store(a, 2, "s46", "s[4:7]", 20)
    a("s_endpgm")

def gen_k2(a):
    name = "attn_down_kernel"
    kernel_head(a, name)
    a("s_cmp_ge_u32 s2, 512")
    a("s_cbranch_scc1 L_k2_end")
    stamp(a, 0)
    a("s_load_dwordx2 s[4:5], s[0:1], 72")
    a("v_and_b32 v2, 63, v0")
    a("v_lshrrev_b32 v3, 6, v0")
    a("v_lshlrev_b32 v1, 4, v2")
    a("v_readfirstlane_b32 s46, v3")
    a("s_cmp_ge_u32 s2, 256")
    a("s_cbranch_scc1 L_k2_down")
    gen_attn(a)
    a.label("L_k2_down")
    gen_down(a)
    a.label("L_k2_end")
    a("s_endpgm")
    return (name, f"grid=(512,1,1) block=(256,1,1) lds={K2_LDS}", kernel_desc(name, 192, 192, 96))

def check_g(wsn, h, inp, cmp, torch):
    import numpy as np
    g = torch.from_numpy(wsn[WS_G//2: WS_G//2 + 2*2*2048*1024].view(np.float32).copy())
    g = g.reshape(2, 64, 32, 4, 2, 32, 4).sum(0)
    g = g.permute(0, 4, 1, 2, 3, 5).reshape(2048, 1024)
    cmp("gpre", g, h.cuda() @ inp["B_w_down"].float().cuda())

K3_NSLOT = 6
K3_SLOT = 24576
def gen_k3(a):
    name = "final_kernel"
    kernel_head(a, name)
    ACC = lambda P, e, i: V(32 + 4*(4*P + 2*e + i), 4)
    OF = lambda st, u, i: V(64 + 48*st + 24*u + 4*i, 4)
    WF = lambda st, u, P, e: V(64 + 48*st + 24*u + 8 + 4*(2*P + e), 4)
    a("s_cmp_ge_u32 s2, 256")
    a("s_cbranch_scc1 L_k3_end")
    stamp(a, 0)
    a("s_load_dwordx2 s[4:5], s[0:1], 72")
    a("s_load_dwordx2 s[8:9], s[0:1], 16")
    a("s_load_dwordx2 s[12:13], s[0:1], 0")
    a("s_load_dwordx2 s[16:17], s[0:1], 56")
    a("v_and_b32 v2, 63, v0")
    a("v_lshrrev_b32 v3, 6, v0")
    a("v_lshlrev_b32 v1, 4, v2")
    a("v_readfirstlane_b32 s46, v3")
    a("s_bfe_u32 s57, s2, 0x20001")
    a("s_lshl_b32 s57, s57, 2")
    a("s_bfe_u32 s3, s2, 0x20003")
    a("s_add_u32 s57, s57, s3")
    a("s_and_b32 s58, s2, 1")
    a("s_lshl_b32 s58, s58, 3")
    a("s_lshr_b32 s3, s2, 5")
    a("s_add_u32 s58, s58, s3")
    a("s_lshl_b32 s45, s46, 12")
    a("s_lshl_b32 s43, s57, 18")
    a("s_add_u32 s43, s43, s45")
    a(f"s_add_u32 s43, s43, {WS_O}")
    a("s_lshl_b32 s44, s46, 11")
    a("s_add_u32 s44, s44, 16384")
    a("s_lshl_b32 s47, s46, 15")
    a("s_lshl_b32 s3, s58, 7")
    a("s_add_u32 s47, s47, s3")
    a(f"s_add_u32 s48, s47, {8*2048 - 1024}")
    a("v_lshrrev_b32 v3, 3, v2")
    a("v_bfe_u32 v4, v2, 2, 1")
    a("v_bfe_u32 v5, v2, 4, 1")
    a("v_xor_b32 v4, v4, v5")
    a("v_and_b32 v5, 3, v2")
    a("v_lshlrev_b32 v8, 11, v3")
    a("v_lshl_add_u32 v8, v4, 6, v8")
    a("v_lshl_add_u32 v8, v5, 4, v8")
    a("s_waitcnt lgkmcnt(0)")
    a(f"s_mov_b32 s6, {WS_SIZE}")
    a("s_mov_b32 s7, 0x00020000")
    a(f"s_mov_b32 s10, {1024*2048}")
    a("s_mov_b32 s11, 0x00020000")
    a(f"s_mov_b32 s14, {2048*2048}")
    a("s_mov_b32 s15, 0x00020000")
    a(f"s_mov_b32 s18, {2048*2048}")
    a("s_mov_b32 s19, 0x00020000")
    def dma(slot):
        b = slot * K3_SLOT
        return [f"s_add_u32 m0, s45, {b}",
                "buffer_load_dwordx4 v1, s[4:7], s43 offen lds",
                "buffer_load_dwordx4 v1, s[4:7], s43 offen offset:1024 lds",
                "buffer_load_dwordx4 v1, s[4:7], s43 offen offset:2048 lds",
                ["buffer_load_dwordx4 v1, s[4:7], s43 offen offset:3072 lds", f"s_add_u32 m0, s44, {b}", "s_add_u32 s43, s43, 16384"],
                "buffer_load_dwordx4 v8, s[8:11], s47 offen lds",
                ["buffer_load_dwordx4 v8, s[8:11], s48 offen offset:1024 lds", "s_add_u32 s47, s47, 131072", "s_add_u32 s48, s48, 131072"]]
    ND = 6
    for st in range(K3_NSLOT):
        d = dma(st); a.ext(flat([d[0], "s_nop 0"] + d[1:]))
    a("s_lshl_b32 s3, s46, 11")
    a("v_add_u32 v9, s3, v1")
    a("v_lshrrev_b32 v3, 2, v2")
    a("v_lshlrev_b32 v6, 7, v3")
    a("v_and_b32 v5, 3, v2")
    a("v_lshl_add_u32 v6, v5, 4, v6")
    a("v_add_u32 v6, 16384, v6")
    a("v_bfe_u32 v4, v2, 3, 1")
    a("v_lshl_add_u32 v12, v4, 6, v6")
    a("v_xor_b32 v4, 1, v4")
    a("v_lshl_add_u32 v15, v4, 6, v6")
    for r in (9, 12, 15):
        a(f"v_add_u32 v{r+1}, {2*K3_SLOT}, v{r}")
        a(f"v_add_u32 v{r+2}, {4*K3_SLOT}, v{r}")
    for r in range(32, 64): a(f"v_mov_b32 v{r}, 0")
    a("v_and_b32 v3, 15, v2")
    a("v_lshrrev_b32 v4, 4, v2")
    a("v_lshlrev_b32 v18, 11, v3")
    a("v_lshl_add_u32 v18, v4, 4, v18")
    a("s_lshl_b32 s50, s57, 2")
    a("s_add_u32 s50, s50, s46")
    a("s_lshl_b32 s51, s50, 16")
    a("s_lshl_b32 s3, s58, 7")
    a("s_add_u32 s51, s51, s3")
    a("s_add_u32 s52, s51, 32768")
    a("v_lshlrev_b32 v19, 10, v4")
    a("v_lshl_add_u32 v19, v3, 4, v19")
    a("s_lshl_b32 s53, s50, 5")
    a("s_lshl_b32 s3, s58, 1")
    a("s_add_u32 s53, s53, s3")
    a("s_lshl_b32 s53, s53, 12")
    a(f"s_add_u32 s53, s53, {WS_G}")
    def reads(slot, st):
        out = []
        sp, so = slot // 2, (slot % 2) * K3_SLOT
        for u in range(2):
            for i in range(2):
                out.append(f"ds_read_b128 {OF(st, u, i)}, v{9+sp} offset:{so + u*8192 + i*1024}")
            for P in range(2):
                for e in range(2):
                    for rd in range(2):
                        out.append(f"ds_read_b64_tr_b16 {WF(st, u, P, e)[2*rd:2*rd+2]}, v{12+3*P+sp} offset:{so + (32*u + 16*rd)*128 + e*8}")
        return out
    GR = lambda ks, P, e, i: V(160 + 4*(8*ks + 4*P + 2*e + i), 4)
    XR = lambda P, i: V(224 + 4*(2*P + i), 4)
    def eloads():
        out = []
        for ks in range(2):
            for P in range(2):
                o = [f"s_add_u32 s3, s53, {ks*8*MB + P*4096}"]
                for e in range(2):
                    for i in range(2):
                        o.append(f"buffer_load_dwordx4 {GR(ks, P, e, i)}, v19, s[4:7], s3 offen offset:{e*512 + i*256}")
                out.append(o)
        o = []
        for P in range(2):
            for i in range(2):
                o.append(f"buffer_load_dwordx4 {XR(P, i)}, v18, s[12:15], s{51+i} offen offset:{P*64}")
        out.append(o)
        return out
    NST = 16
    issued = K3_NSLOT * ND
    done_at = {st: (st + 1) * ND for st in range(K3_NSLOT)}
    def waitfor(st):
        return issued - done_at[st]
    a(f"s_waitcnt vmcnt({waitfor(0)})")
    a("s_barrier")
    a.ext(reads(0, 0))
    stamp(a, 1)
    a(f"s_waitcnt vmcnt({waitfor(1)}) lgkmcnt(0)")
    a("s_barrier")
    for s in range(NST):
        st = s % 2
        m_ = [mfma16(ACC(P, e, i), WF(st, u, P, e), OF(st, u, i)) for u in range(2) for P in range(2) for e in range(2) for i in range(2)]
        rd = reads((s+1) % K3_NSLOT, (s+1) % 2) if s + 1 < NST else []
        dm = []
        if s + K3_NSLOT < NST:
            dm = dma(s % K3_NSLOT); issued += ND; done_at[s + K3_NSLOT] = issued
        elif s + K3_NSLOT == NST:
            dm = eloads(); issued += 20
        fill = []
        for g in range(16):
            a(m_[g])
            a.ext(rd[(g*20)//16:((g+1)*20)//16] if rd else [])
            if g % 2 == 1 and g // 2 < len(dm): a.ext(flat([dm[g // 2]]))
        if s + 2 < NST:
            a(f"s_waitcnt vmcnt({waitfor(s+2)}) lgkmcnt(0)")
            a("s_barrier")
        elif s + 1 < NST:
            a("s_waitcnt lgkmcnt(0)")
    stamp(a, 2)
    a(f"s_mov_b32 s66, {f2u(-LOG2E)}")
    a(f"s_mov_b32 s67, {f2u(-LOG2E)}")
    a("s_waitcnt vmcnt(0)")
    a("s_nop 4")
    for P in range(2):
        for i in range(2):
            T = V(64, 8); Xf = V(72, 8)
            gs = [GR(0, P, e, i) for e in range(2)]
            for e in range(2):
                for k in (0, 2): a(f"v_pk_add_f32 {gs[e][k:k+2]}, {gs[e][k:k+2]}, {GR(1, P, e, i)[k:k+2]}")
            for e in range(2):
                for k in (0, 2): a(f"v_pk_mul_f32 {T[4*e+k:4*e+k+2]}, {gs[e][k:k+2]}, s[66:67]")
            for k in range(8): a(f"v_exp_f32 {T[k]}, {T[k]}")
            for k in range(4):
                a(f"v_lshlrev_b32 {Xf[2*k]}, 16, {XR(P, i)[k]}")
                a(f"v_and_b32 {Xf[2*k+1]}, 0xffff0000, {XR(P, i)[k]}")
            for k in range(0, 8, 2): a(f"v_pk_add_f32 {T[k:k+2]}, {T[k:k+2]}, 1.0 op_sel_hi:[1,0]")
            for k in range(8): a(f"v_rcp_f32 {T[k]}, {T[k]}")
            for e in range(2):
                for k in (0, 2): a(f"v_pk_mul_f32 {gs[e][k:k+2]}, {gs[e][k:k+2]}, {ACC(P, e, i)[k:k+2]}")
            for e in range(2):
                for k in (0, 2): a(f"v_pk_fma_f32 {Xf[4*e+k:4*e+k+2]}, {gs[e][k:k+2]}, {T[4*e+k:4*e+k+2]}, {Xf[4*e+k:4*e+k+2]}")
            for k in range(4): a(f"v_cvt_pk_bf16_f32 {XR(P, i)[k]}, {Xf[2*k]}, {Xf[2*k+1]}")
            a(f"buffer_store_dwordx4 {XR(P, i)}, v18, s[16:19], s{51+i} offen offset:{P*64}")
    if STAMP:
        a("s_waitcnt vmcnt(0)")
        stamp(a, 3)
        stamp_store(a, 3, "s46", "s[4:7]", 20)
    a.label("L_k3_end")
    a("s_endpgm")
    return (name, f"grid=(256,1,1) block=(256,1,1) lds={K3_NSLOT*K3_SLOT}", kernel_desc(name, 240, 240, 96))

def build(gens, path):
    a = Asm()
    infos = [g(a) for g in gens]
    hdr = "".join(f"; @launch kernel={n} {l}\n" for n, l, d in infos)
    s = hdr + '.amdgcn_target "amdgcn-amd-amdhsa--gfx950"\n.text\n' + a.text()
    s += '.section .rodata,"a"\n' + "".join(d for n, l, d in infos)
    open(path, "w").write(s)

if __name__ == "__main__":
    build([gen_ln, gen_gemm1, gen_k2, gen_k3], sys.argv[1] if len(sys.argv) > 1 else "k.s")
```
